```python
import torch

def _softmax(x, axis=-1):
    return torch.softmax(x, dim=axis)
def _gelu(x):
    return torch.nn.functional.gelu(x, approximate="tanh")
def _silu(x):
    return torch.nn.functional.silu(x)
def _sigmoid(x):
    return torch.sigmoid(x)
def _layernorm(x, axis=-1, eps=1e-5):
    m = x.mean(dim=axis, keepdim=True)
    v = x.var(dim=axis, keepdim=True, unbiased=False)
    return (x - m) / torch.sqrt(v + eps)
def _scatter_add(tgt, idx, src, axis=0):
    return tgt.clone().index_add_(axis, idx, src)
def _segment_sum(src, seg, n):
    out = torch.zeros((n,) + src.shape[1:], dtype=src.dtype)
    return out.index_add_(0, seg, src)
def _pad(x, pw):
    flat = tuple(v for pair in reversed(pw) for v in pair)
    return torch.nn.functional.pad(x, flat)

kernel_name = 'recurrent_scan__mha_block__dense_activation_squared_relu__prompt'

def setup_inputs():

    _w = (lambda a: (lambda t: t.to(torch.bfloat16) if t.is_floating_point() else t)(torch.as_tensor(a)))
    def _A_setup():
        B, S, D, H = 1, 2048, 512, 32
        return {
            "x": _w((lambda *s: torch.randn(*s, dtype=torch.bfloat16) * 0.05)(B, S, D)),
            "wqkv": _w((lambda *s: torch.randn(*s, dtype=torch.bfloat16) * 0.05)(D, 3 * D)),
            "wo": _w((lambda *s: torch.randn(*s, dtype=torch.bfloat16) * 0.05)(D, D)),
        }
    _A_in = _A_setup()

    def _B_setup():
        B, S, D, F = 1, 2048, 512, 1792
        return {
            "x": _w((lambda *s: torch.randn(*s, dtype=torch.bfloat16) * 0.05)(B, S, D)),
            "w1": _w((lambda *s: torch.randn(*s, dtype=torch.bfloat16) * 0.05)(D, F)),
            "b1": _w((lambda *s: torch.randn(*s, dtype=torch.bfloat16) * 0.4)(F)),
            "w2": _w((lambda *s: torch.randn(*s, dtype=torch.bfloat16) * 0.05)(F, D)),
            "b2": _w((lambda *s: torch.randn(*s, dtype=torch.bfloat16) * 1.6)(D)),
        }
    _B_in = _B_setup()

    return {
        "A_x": _A_in["x"],
        "A_wqkv": _A_in["wqkv"],
        "A_wo": _A_in["wo"],
        "B_x": _B_in["x"],
        "B_w1": _B_in["w1"],
        "B_b1": _B_in["b1"],
        "B_w2": _B_in["w2"],
        "B_b2": _B_in["b2"],
    }

def reference(A_x, A_wqkv, A_wo, B_x, B_w1, B_b1, B_w2, B_b2):
    def _A_ref(x, wqkv, wo):
        B, S, D = x.shape
        H = 32
        Dh = D // H
        qkv = (lambda x, *d: x.permute(*d))((x @ wqkv).reshape(B, S, 3, H, Dh), 2, 0, 3, 1, 4)
        q, k, v = qkv[0], qkv[1], qkv[2]
        scores = torch.einsum("bhqd,bhkd->bhqk", q, k) * (Dh ** -0.5)
        p = _softmax(scores, axis=-1)
        o = torch.einsum("bhqk,bhkd->bhqd", p, v)
        return (lambda x, *d: x.permute(*d))(o, 0, 2, 1, 3).reshape(B, S, D) @ wo

    def _B_ref(x, w1, b1, w2, b2):
        h = torch.einsum("bsd,df->bsf", x, w1) + b1
        zero = torch.zeros_like(h)
        r = torch.where(h > zero, h, zero)
        h = r * r
        out = torch.einsum("bsf,fd->bsd", h, w2) + b2
        return out

    x = A_x
    xn = _layernorm(x, axis=-1)
    s = _A_ref(xn, A_wqkv, A_wo)
    g = _silu(_B_ref(xn, B_w1, B_b1, B_w2, B_b2))
    return x + s * g
```

```python
import re

def v(i, n=1):
    return f"v{i}" if n == 1 else f"v[{i}:{i+n-1}]"
def s(i, n=1):
    return f"s{i}" if n == 1 else f"s[{i}:{i+n-1}]"

class Prog:
    def __init__(self):
        self.lines = []
        self.uid = 0
    def e(self, txt):
        for ln in txt.split("\n"):
            ln = ln.strip()
            if ln: self.lines.append("  " + ln)
    def __call__(self, txt): self.e(txt)
    def label(self, name): self.lines.append(name + ":")
    def raw(self, txt): self.lines.append(txt)
    def c(self, txt): self.lines.append("  ; " + txt)
    def newlabel(self, base):
        self.uid += 1
        return f"L_{base}_{self.uid}"
    def nop(self, n):
        while n > 0:
            k = min(n, 16)
            self.e(f"s_nop {k-1}")
            n -= k
    def text(self): return "\n".join(self.lines) + "\n"

class Fifo:
    def __init__(self, prog, name, maxn):
        self.p = prog; self.name = name; self.maxn = maxn; self.q = []
    def issue(self, tag): self.q.append(tag)
    def wait(self, tags, emit=True):
        if not isinstance(tags, (list, tuple, set)): tags = [tags]
        last = -1
        for i, t in enumerate(self.q):
            if t in tags: last = i
        if last < 0: return None
        n = len(self.q) - 1 - last
        n = min(n, self.maxn)
        self.q = self.q[len(self.q) - n:] if n > 0 else []
        if emit: self.p.e(f"s_waitcnt {self.name}({n})")
        return n
    def drain(self, emit=True):
        self.q = []
        if emit: self.p.e(f"s_waitcnt {self.name}(0)")

TRANS = ("v_exp_f32","v_log_f32","v_rcp_f32","v_rsq_f32","v_sqrt_f32","v_sin_f32","v_cos_f32","v_exp_f16","v_rcp_iflag_f32")
def regs_of(tok):
    tok = tok.strip()
    neg = tok.lstrip("-").replace("abs(", "").replace(")", "").replace("|", "")
    m = re.fullmatch(r"([vsa])\[(\d+):(\d+)\]", neg)
    if m: return [(m.group(1), i) for i in range(int(m.group(2)), int(m.group(3)) + 1)]
    m = re.fullmatch(r"([vsa])(\d+)", neg)
    if m: return [(m.group(1), int(m.group(2)))]
    if neg == "vcc": return [("s", "vcc_lo"), ("s", "vcc_hi")]
    if neg in ("vcc_lo", "vcc_hi"): return [("s", neg)]
    if neg == "exec": return [("x", "exec")]
    if neg in ("exec_lo", "exec_hi"): return [("x", "exec")]
    if neg == "m0": return [("m", "m0")]
    return []

class Ins:
    def __init__(self, text, idx):
        self.text = text; self.idx = idx
        t = text.split(";")[0].strip()
        parts = t.split(None, 1)
        self.op = parts[0]
        rest = parts[1] if len(parts) > 1 else ""
        ops = [o.strip() for o in re.split(r",(?![^\[]*\])", rest)] if rest else []
        clean = []
        self.mods = ""
        for o in ops:
            w = o.split()
            if not w: continue
            clean.append(w[0]); self.mods += " " + " ".join(w[1:])
        self.ops = clean
        op = self.op
        self.is_mfma = op.startswith("v_mfma")
        self.is_valu = op.startswith("v_") and not self.is_mfma
        self.is_salu = op.startswith("s_") and not op.startswith(("s_waitcnt","s_nop","s_barrier","s_endpgm","s_branch","s_cbranch","s_load","s_memtime","s_memrealtime","s_sleep","s_setprio"))
        self.is_ds = op.startswith("ds_")
        self.is_vmem = op.startswith(("buffer_","global_","flat_"))
        self.is_lds_dma = self.is_vmem and (" lds" in (" "+self.mods+" ").replace("  "," ") or "_lds_" in op)
        self.is_trans = op.replace("_e32","").replace("_e64","") in TRANS
        self.wr = []; self.rd = []
        R = [regs_of(o) for o in self.ops]
        flat = lambda L: [x for l in L for x in l]
        if self.is_mfma:
            self.wr = R[0]; self.rdA = R[1]; self.rdB = R[2]; self.rdC = R[3]; self.rd = R[1]+R[2]+R[3]
            self.passes = 8 if "32x32" in op else 4
        elif self.is_valu:
            if op.startswith("v_cmp"):
                self.wr = R[0]; self.rd = flat(R[1:])
            elif op.startswith(("v_permlane16_swap","v_permlane32_swap")):
                self.wr = R[0]+R[1]; self.rd = R[0]+R[1]
            elif op.startswith(("v_add_co","v_sub_co","v_addc_co","v_subb_co","v_mad_u64_u32","v_subrev_co")):
                self.wr = R[0]+R[1]; self.rd = flat(R[2:])
            elif op.startswith(("v_fmac","v_dot2c","v_pk_fmac","v_mac")):
                self.wr = R[0]; self.rd = flat(R)
            elif op.startswith("v_nop"):
                pass
            else:
                self.wr = R[0]; self.rd = flat(R[1:])
                if "UNUSED_PRESERVE" in self.mods or op.startswith("v_writelane"): self.rd += R[0]
            if op.startswith("v_cndmask") and len(self.ops) == 3: self.rd += regs_of("vcc")
        elif self.is_ds:
            if op.startswith(("ds_read","ds_bpermute","ds_permute","ds_swizzle")) or "_rtn" in op:
                self.wr = R[0]; self.rd = flat(R[1:])
            else:
                self.rd = flat(R)
        elif self.is_vmem:
            if ("load" in op and not self.is_lds_dma):
                self.wr = R[0]; self.rd = flat(R[1:])
            elif "atomic" in op and "sc0" in self.mods:
                self.wr = R[0]; self.rd = flat(R[1:])
            else:
                self.rd = flat(R)
            self.wide_store = ("store_dwordx4" in op or "store_dwordx3" in op)
        elif op.startswith("s_load") or op.startswith("s_memtime") or op.startswith("s_memrealtime"):
            self.wr = R[0]; self.rd = flat(R[1:])
        elif self.is_salu:
            if op.startswith(("s_cmp","s_bitcmp")):
                self.rd = flat(R)
            elif op.startswith("s_getpc"):
                self.wr = R[0]
            elif op.startswith("s_getreg"):
                self.wr = R[0]
            else:
                self.wr = R[0] if R else []; self.rd = flat(R[1:])
            if "saveexec" in op: self.wr = self.wr + [("x","exec")]
        self.ws = 1
        if op == "s_nop": self.ws = int(self.ops[0], 0) + 1

def check_hazards(text, verbose=True):
    ins = []; labels = {}
    for ln in text.split("\n"):
        t = ln.split(";")[0].strip()
        if not t or t.startswith("."): continue
        if t.endswith(":"):
            labels[t[:-1]] = len(ins); continue
        ins.append(Ins(t, len(ins)))
    n = len(ins)
    preds = [[] for _ in range(n + 1)]
    for i, I in enumerate(ins):
        op = I.op
        if op == "s_endpgm": continue
        if op == "s_branch":
            tgt = labels.get(I.ops[0]);
            if tgt is not None: preds[tgt].append(i)
            continue
        if op.startswith("s_cbranch"):
            tgt = labels.get(I.ops[0])
            if tgt is not None: preds[tgt].append(i)
        preds[i + 1].append(i)
    probs = []
    isv = lambda r: r[0] in ("v", "a")
    def ov(a, b): return set(a) & set(b)
    def rule(P, C):
        need = 0
        Pw_v = [r for r in P.wr if isv(r)]
        Pw_s = [r for r in P.wr if r[0] == "s"]
        if P.is_valu:
            if C.is_mfma and ov(Pw_v, C.rd): need = max(need, 2)
            if P.is_trans and C.is_valu and not C.is_trans and ov(Pw_v, C.rd): need = max(need, 1)
            if P.is_trans and (C.is_mfma) and ov(Pw_v, C.rd): need = max(need, 2)
            if C.is_valu and C.op.startswith(("v_readfirstlane","v_readlane")) and ov(Pw_v, C.rd): need = max(need, 1)
            if C.is_valu and C.op.startswith("v_permlane") and ov(Pw_v, C.rd): need = max(need, 2)
            if C.is_valu and ("dpp" in C.op or "row_" in C.mods or "quad_perm" in C.mods) and ov(Pw_v, C.rd): need = max(need, 2)
            if C.is_valu and ov(Pw_s, C.rd):
                need = max(need, 4 if C.op.startswith(("v_readlane","v_writelane")) else 2)
            if C.is_vmem and ov(Pw_s, C.rd): need = max(need, 5)
            if (C.is_salu or C.op.startswith("s_cbranch_vcc") or C.op.startswith("s_load")) and ov(Pw_s, C.rd): need = max(need, 1)
            if ("sdwa" in P.op or "op_sel" in P.mods and not P.op.startswith("v_pk")) and C.is_valu and ov(Pw_v, C.rd): need = max(need, 1)
        if P.is_mfma:
            p4 = P.passes == 4
            D = P.wr
            if C.is_mfma:
                if ov(D, C.rdC):
                    same = (C.rdC == D and C.passes == P.passes)
                    need = max(need, 0 if same else (6 if p4 else 10))
                if ov(D, C.rdA + C.rdB): need = max(need, 8 if p4 else 12)
                if ov(D, C.wr) and not ov(D, C.rdC): need = max(need, 8 if p4 else 12)
            elif C.is_valu or C.is_ds or C.is_vmem:
                if ov(D, C.rd) or ov(D, C.wr): need = max(need, 8 if p4 else 12)
            if C.is_valu and ov(P.rdC, C.wr): need = max(need, 3 if p4 else 7)
        if P.is_salu and ("m", "m0") in P.wr and C.is_lds_dma: need = max(need, 1)
        if P.is_vmem and getattr(P, "wide_store", False) and (C.is_valu or C.is_ds or C.is_vmem or C.is_mfma):
            data = [r for r in P.rd if isv(r)]
            d0 = regs_of(P.ops[0]) if P.op.startswith("buffer") else regs_of(P.ops[1])
            if ov(d0, C.wr): need = max(need, 2 if C.is_valu else 1)
        return need
    MAXD = 20
    for ci, C in enumerate(ins):
        stack = [(p, 0) for p in preds[ci]]
        seen = {}
        while stack:
            pi, d = stack.pop()
            if seen.get(pi, 99) <= d: continue
            seen[pi] = d
            P = ins[pi]
            need = rule(P, C)
            if need > d:
                probs.append(f"hazard: need {need} have {d}: [{P.idx}] {P.text}  ->  [{C.idx}] {C.text}")
            nd = d + P.ws
            if nd < MAXD:
                for pp in preds[pi]: stack.append((pp, nd))
    return probs
```

```python
from asmlib import *
import struct
def f32(x): return "0x%08x" % struct.unpack("<I", struct.pack("<f", x))[0]

WS_Q = 0x0
WS_K = 0x200000
WS_V = 0x400000
VH   = 69632
WS_H = 0x700000
WS_G = 0xE00000
WS_O = 0x1000000
WS_USED = 0x1400000
WS_STAMP = 0x1300000

STG = 43008
XPART = 16384
CS_TAB = 3 * STG
ST_TAB = CS_TAB + 1024
K1_LDS = ST_TAB + 1024
QSCALE = 0.25 * 1.4426950408889634

V_L, V_N, V_G = 1, 2, 3
ACC = 16
WF = 72
XF = 100
CS = 116
ST = 123
VX0, VW0, VX, VW = 127, 128, 129, 130
BIAS = 132
WA = 146
WS_ = 152
VT = 156
VXD = 158
T0 = 4
K1_VGPRS = 160
E_ST = XF
E_TP = XF + 4
E_QS, E_VS, E_TW, E_TR, E_OS = XF+8, XF+9, XF+10, XF+11, XF+12
E_ONE = XF + 14

S_X = 8; S_B = 16; S_WS = 20
S_RB, S_CB, S_TG, S_W, S_T = 24, 25, 26, 27, 28
S_CUR, S_C, S_ONES = 29, 30, 31
S_XM0, S_WM0, S_MULT, S_TMP, S_TMP2, S_U0 = 32, 33, 34, 35, 36, 37
S_HALF = 38
S_DUM = 40
S_CB416 = 42
S_NXT = 43

STAMP = False
NO_DOT = False
NO_DMA = False
NO_MFMA = False
NO_ADD = False
NO_LDSRD = False
CHUNK_STAMPS = False
NO_BAR = False
S_TS = 50
def stamp(p, idx):
    if not STAMP: return
    p(f"s_memtime s[{S_TS}:{S_TS+1}]")
    p("s_waitcnt lgkmcnt(0)")
    p(f"s_mov_b32 s{52+idx}, s{S_TS}")
def stamp_dyn(p, base):
    if not STAMP: return
def stamps_out(p, n):
    if not STAMP: return
    p("s_waitcnt vmcnt(0)")
    p(f"s_lshl_b32 s44, s2, 10")
    p(f"s_lshl_b32 s45, s{S_W}, 7")
    p(f"s_add_u32 s44, s44, s45")
    p(f"s_add_u32 s44, s44, {WS_STAMP}")
    for i in range(n):
        p(f"v_mov_b32 v4, s{52+i}")
        p(f"v_mov_b32 v5, {4*i}")
        p(f"buffer_store_dword v4, v5, s[{S_WS}:{S_WS+3}], s44 offen")
def acc(u, tt): return ACC + (u * 2 + tt) * 4
def wf(u): return WF + 4 * u
def xf(buf, tt): return XF + (buf * 2 + tt) * 4

def w_pattern(p, jj):
    a, b, c_, d, e_ = T0, T0 + 1, T0 + 2, T0 + 3, T0 + 4
    p(f"v_add_u32 v{a}, s{S_TMP}, v{V_L}")
    p(f"v_mul_u32_u24 v{b}, 2521, v{a}")
    p(f"v_lshrrev_b32 v{b}, 16, v{b}")
    p(f"v_mul_u32_u24 v{c_}, 26, v{b}")
    p(f"v_sub_u32 v{a}, v{a}, v{c_}")
    p(f"v_lshl_add_u32 v{a}, v{a}, 4, s{S_CB416}")
    p(f"v_and_b32 v{c_}, 4, v{b}")
    p(f"v_and_b32 v{d}, 8, v{b}")
    p(f"v_and_b32 v{b}, 0x13, v{b}")
    p(f"v_cmp_le_u32 vcc, 3072, v{a}")
    p(f"v_lshl_or_b32 v{b}, v{c_}, 1, v{b}")
    p(f"v_lshrrev_b32 v{d}, 1, v{d}")
    p(f"v_or_b32 v{b}, v{b}, v{d}")
    p(f"v_cndmask_b32 v{WS_+jj}, v{T0+5}, v{T0+6}, vcc")
    p(f"v_cndmask_b32 v{d}, v{T0+7}, v{T0+9}, vcc")
    p(f"v_cndmask_b32 v{e_}, v{T0+8}, v{T0+10}, vcc")
    p(f"v_mad_u32_u24 v{a}, v{b}, v{WS_+jj}, v{a}")
    p(f"v_add_co_u32 v{WA+2*jj}, vcc, v{d}, v{a}")
    p.nop(2)
    p(f"v_addc_co_u32 v{WA+2*jj+1}, vcc, 0, v{e_}, vcc")

def dma_chunk(p, role, vm):
    if role == 0:
        p(f"s_lshl_b32 s{S_TMP}, s{S_TMP2}, 7")
        p(f"s_add_u32 s44, s{S_CUR}, s{S_XM0}")
        for tt in range(2):
            for ks in range(2):
                p(f"s_add_u32 m0, s44, {tt*2048 + ks*1024}")
                p(f"s_add_u32 s45, s{S_TMP}, {tt*16384 + ks*64}")
                p(f"buffer_load_dwordx4 v{VXD}, s[{S_X}:{S_X+3}], s45 offen lds")
                vm.issue('x')
        p(f"s_lshl_b32 s{S_MULT}, s{S_TMP2}, 6")
        p(f"s_add_u32 s{S_MULT}, s{S_MULT}, s{S_HALF}")
        p(f"s_add_u32 m0, s{S_CUR}, s{S_WM0}")
        p(f"v_mad_u64_u32 v[{VT}:{VT+1}], s[{S_DUM}:{S_DUM+1}], v{WS_}, s{S_MULT}, v[{WA}:{WA+1}]")
        p(f"global_load_lds_dwordx4 v[{VT}:{VT+1}], off")
        vm.issue('w')
    else:
        p(f"s_add_u32 s44, s{S_CUR}, s{S_WM0}")
        for half in range(2):
            p(f"s_lshl_b32 s{S_MULT}, s{S_TMP2}, 6")
            if half: p(f"s_add_u32 s{S_MULT}, s{S_MULT}, 32")
            for jj in range(3):
                p(f"s_add_u32 m0, s44, {jj*1024 + half*13312}")
                p(f"v_mad_u64_u32 v[{VT}:{VT+1}], s[{S_DUM}:{S_DUM+1}], v{WS_+jj}, s{S_MULT}, v[{WA+2*jj}:{WA+2*jj+1}]")
                p(f"global_load_lds_dwordx4 v[{VT}:{VT+1}], off")
                vm.issue('w')

def rd_x(p, lg, buf, ks):
    if NO_LDSRD and p.inloop: return
    for tt in range(2):
        p(f"ds_read_b128 {v(xf(buf,tt),4)}, v{VX} offset:{tt*2048 + ks*1024}")
        lg.issue(('x', buf, tt))
def rd_w(p, lg, u, u0, ks):
    if NO_LDSRD and p.inloop: return
    for e in range(2):
        off = XPART + (32*ks + 8*e)*416 + (u0+u)*32
        p(f"ds_read_b64_tr_b16 {v(wf(u)+2*e,2)}, v{VW} offset:{off}")
        lg.issue(('w', u, e))

def step(p, lg, role, ks, with_cs, tagp):
    NU = 7 if role == 0 else 6
    u0 = 0 if role == 0 else 7
    nper = 5 if role == 0 else 6
    buf = ks
    stats = []
    if NO_DOT: with_cs = False
    if role == 1 and not NO_DOT:
        for d in range(4):
            for tt in range(2):
                stats.append(f"v_dot2c_f32_bf16 v{ST+tt}, s{S_ONES}, v{xf(buf,tt)+d}")
                stats.append(f"v_dot2c_f32_bf16 v{ST+2+tt}, v{xf(buf,tt)+d}, v{xf(buf,tt)+d}")
    def pop_stats(k):
        for _ in range(k):
            if stats: p(stats.pop(0))
    for u in range(NU):
        need = [('w', u, 0), ('w', u, 1)]
        if u == 0: need += [('x', buf, 0), ('x', buf, 1)]
        lg.wait(need)
        for tt in range(2):
            if not NO_MFMA: p(f"v_mfma_f32_16x16x32_bf16 {v(acc(u,tt),4)}, {v(wf(u),4)}, {v(xf(buf,tt),4)}, {v(acc(u,tt),4)}")
        if with_cs:
            for d in range(4):
                p(f"v_dot2c_f32_bf16 v{CS+u}, s{S_ONES}, v{wf(u)+d}")
        pop_stats(3)
        if ks == 0:
            if u == 0: rd_x(p, lg, 1, 1)
            rd_w(p, lg, u, u0, 1)
        else:
            if u == 1:
                p("s_waitcnt lgkmcnt(0)"); lg.q = []
                lw = p.newlabel("vw")
                p(f"s_cmp_lt_u32 s{S_C}, 6")
                p(f"s_cbranch_scc1 {lw}")
                p("s_waitcnt vmcnt(0)")
                p.label(lw)
                p(f"s_waitcnt vmcnt({nper})")
                if not NO_BAR: p("s_barrier")
                ld = p.newlabel("nodma")
                p(f"s_cmp_ge_u32 s{S_C}, 5")
                p(f"s_cbranch_scc1 {ld}")
                p(f"s_add_u32 s{S_TMP2}, s{S_C}, 3")
                if not NO_DMA: dma_chunk(p, role, Fifo(p, "vmcnt", 63))
                p.label(ld)
                p(f"s_add_u32 s{S_CUR}, s{S_CUR}, {STG}")
                p(f"s_cmp_eq_u32 s{S_CUR}, {3*STG}")
                p(f"s_cselect_b32 s{S_CUR}, 0, s{S_CUR}")
                p(f"v_add_u32 v{VX}, s{S_CUR}, v{VX0}")
                p(f"v_add_u32 v{VW}, s{S_CUR}, v{VW0}")
                rd_x(p, lg, 0, 0)
                rd_w(p, lg, 0, u0, 0)
                rd_w(p, lg, 1, u0, 0)
            elif u >= 2:
                rd_w(p, lg, u, u0, 0)
    pop_stats(99)

def epilogue_unit(p, role, u):
    u0 = 0 if role == 0 else 7
    csr = WF + 4*u
    b = T0
    y = T0 + 4
    tpair = E_TP
    p(f"v_lshlrev_b32 v{b}, 16, v{BIAS+2*u}")
    p(f"v_and_b32 v{b+1}, 0xffff0000, v{BIAS+2*u}")
    p(f"v_lshlrev_b32 v{b+2}, 16, v{BIAS+2*u+1}")
    p(f"v_and_b32 v{b+3}, 0xffff0000, v{BIAS+2*u+1}")
    for tt in range(2):
        stp = E_ST + 2*tt
        for h in range(2):
            p(f"v_pk_fma_f32 v[{tpair+2*h}:{tpair+2*h+1}], v[{csr+2*h}:{csr+2*h+1}], v[{stp}:{stp+1}], v[{b+2*h}:{b+2*h+1}] op_sel:[0,1,0] op_sel_hi:[1,1,1] neg_lo:[0,1,0] neg_hi:[0,1,0]")
        for h in range(2):
            p(f"v_pk_fma_f32 v[{y+4*tt+2*h}:{y+4*tt+2*h+1}], v[{acc(u,tt)+2*h}:{acc(u,tt)+2*h+1}], v[{stp}:{stp+1}], v[{tpair+2*h}:{tpair+2*h+1}] op_sel_hi:[1,0,1]")
    p(f"s_add_u32 s{S_TMP}, s{S_U0}, {u}")
    lH, lV, lE = p.newlabel("eH"), p.newlabel("eV"), p.newlabel("eE")
    p(f"s_cmp_ge_u32 s{S_TMP}, 96")
    p(f"s_cbranch_scc1 {lH}")
    p(f"s_cmp_ge_u32 s{S_TMP}, 64")
    p(f"s_cbranch_scc1 {lV}")
    p(f"s_cmp_lt_u32 s{S_TMP}, 32")
    p(f"s_cselect_b32 s44, {f32(QSCALE)}, 1.0")
    p(f"s_lshl_b32 s46, s{S_TMP}, 16")
    p(f"s_lshl_b32 s47, s{S_T}, 10")
    p(f"s_add_u32 s46, s46, s47")
    for i in range(8):
        p(f"v_mul_f32 v{y+i}, s44, v{y+i}")
    pk = acc(u, 0)
    for tt in range(2):
        for h in range(2):
            p(f"v_cvt_pk_bf16_f32 v{pk+2*tt+h}, v{y+4*tt+2*h}, v{y+4*tt+2*h+1}")
    for tt in range(2):
        p(f"buffer_store_dwordx2 v[{pk+2*tt}:{pk+2*tt+1}], v{E_QS}, s[{S_WS}:{S_WS+3}], s46 offen offset:{tt*256}")
    p(f"s_branch {lE}")
    p.label(lV)
    for tt in range(2):
        for h in range(2):
            p(f"v_cvt_pk_bf16_f32 v{pk+2*tt+h}, v{y+4*tt+2*h}, v{y+4*tt+2*h+1}")
    for tt in range(2):
        p(f"ds_write_b64 v{E_TW}, v[{pk+2*tt}:{pk+2*tt+1}] offset:{tt*512}")
    p("s_waitcnt lgkmcnt(0)")
    for tt in range(2):
        p(f"ds_read_b64_tr_b16 v[{pk+2*tt}:{pk+2*tt+1}], v{E_TR} offset:{tt*512}")
    p(f"s_sub_u32 s46, s{S_TMP}, 64")
    p(f"s_mul_i32 s46, s46, {VH}")
    p(f"s_mul_i32 s47, s{S_T}, 1088")
    p(f"s_add_u32 s46, s46, s47")
    p(f"s_add_u32 s46, s46, {WS_V}")
    p("s_waitcnt lgkmcnt(0)")
    for tt in range(2):
        p(f"buffer_store_dwordx2 v[{pk+2*tt}:{pk+2*tt+1}], v{E_VS}, s[{S_WS}:{S_WS+3}], s46 offen offset:{tt*544}")
        p(f"buffer_store_dwordx2 v[{E_ONE}:{E_ONE+1}], v{E_OS}, s[{S_WS}:{S_WS+3}], s46 offen offset:{tt*544}")
    p(f"s_branch {lE}")
    p.label(lH)
    p(f"s_sub_u32 s46, s{S_TMP}, 96")
    p(f"s_mul_i32 s47, s{S_T}, 112")
    p(f"s_add_u32 s46, s46, s47")
    p(f"s_lshl_b32 s46, s46, 10")
    p(f"s_add_u32 s46, s46, {WS_H}")
    for i in range(8):
        p(f"v_max_f32 v{acc(u,0)+i}, 0, v{y+i}")
    for i in range(4):
        p(f"v_pk_mul_f32 v[{y+2*i}:{y+2*i+1}], v[{acc(u,0)+2*i}:{acc(u,0)+2*i+1}], v[{acc(u,0)+2*i}:{acc(u,0)+2*i+1}]")
    for tt in range(2):
        for h in range(2):
            p(f"v_cvt_pk_bf16_f32 v{pk+2*tt+h}, v{y+4*tt+2*h}, v{y+4*tt+2*h+1}")
    for tt in range(2):
        p(f"buffer_store_dwordx2 v[{pk+2*tt}:{pk+2*tt+1}], v{E_QS}, s[{S_WS}:{S_WS+3}], s46 offen offset:{tt*256}")
    p.label(lE)

def role_code(p, role, name):
    NU = 7 if role == 0 else 6
    u0 = 0 if role == 0 else 7
    nper = 5 if role == 0 else 6
    t = T0
    p.inloop = False
    if role == 0:
        p(f"v_lshrrev_b32 v{t}, 2, v{V_L}")
        p(f"s_lshl_b32 s{S_TMP}, s{S_RB}, 7")
        p(f"s_lshl_b32 s{S_TMP2}, s{S_TG}, 5")
        p(f"s_add_u32 s{S_TMP}, s{S_TMP}, s{S_TMP2}")
        p(f"v_add_u32 v{t}, s{S_TMP}, v{t}")
        p(f"v_lshrrev_b32 v{t+1}, 5, v{V_L}")
        p(f"v_mul_u32_u24 v{t+1}, 3, v{t+1}")
        p(f"v_and_b32 v{t+2}, 3, v{V_L}")
        p(f"v_xor_b32 v{t+1}, v{t+1}, v{t+2}")
        p(f"v_lshlrev_b32 v{t+1}, 4, v{t+1}")
        p(f"v_lshl_add_u32 v{VXD}, v{t}, 10, v{t+1}")
        p(f"s_lshl_b32 s{S_XM0}, s{S_TG}, 12")
        p(f"s_and_b32 s{S_HALF}, s{S_TG}, 1")
        p(f"s_mul_i32 s{S_WM0}, s{S_HALF}, 13312")
        p(f"s_add_u32 s{S_WM0}, s{S_WM0}, {XPART + 12*1024}")
        p(f"s_lshl_b32 s{S_HALF}, s{S_HALF}, 5")
        p(f"s_mov_b32 s{S_TMP}, {12*64}")
        p("s_waitcnt lgkmcnt(0)")
        srd_setup(p)
        w_pattern(p, 0)
    else:
        p(f"s_mul_i32 s{S_WM0}, s{S_TG}, 3072")
        p(f"s_add_u32 s{S_WM0}, s{S_WM0}, {XPART}")
        p("s_waitcnt lgkmcnt(0)")
        srd_setup(p)
        for jj in range(3):
            p(f"s_mul_i32 s{S_TMP}, s{S_TG}, 192")
            if jj: p(f"s_add_u32 s{S_TMP}, s{S_TMP}, {64*jj}")
            w_pattern(p, jj)
    stamp(p, 1)
    vm = Fifo(p, "vmcnt", 63)
    p(f"s_mov_b32 s{S_CUR}, 0")
    p(f"s_mov_b32 s{S_TMP2}, 0")
    dma_chunk(p, role, vm)
    p(f"s_mul_i32 s{S_U0}, s{S_CB}, 13")
    if u0: p(f"s_add_u32 s{S_U0}, s{S_U0}, {u0}")
    p(f"s_lshl_b32 s{S_TMP}, s{S_U0}, 5")
    p(f"s_sub_u32 s{S_TMP}, s{S_TMP}, 3072")
    p(f"v_lshl_add_u32 v{t}, v{V_G}, 3, s{S_TMP}")
    for u in range(NU):
        p(f"v_add_u32 v{t+1}, {32*u}, v{t}")
        p(f"buffer_load_dwordx2 v[{BIAS+2*u}:{BIAS+2*u+1}], v{t+1}, s[{S_B}:{S_B+3}], 0 offen")
    for cc in (1, 2):
        p(f"s_mov_b32 s{S_CUR}, {cc*STG}")
        p(f"s_mov_b32 s{S_TMP2}, {cc}")
        dma_chunk(p, role, vm)
    p(f"s_mov_b32 s{S_CUR}, 0")
    p(f"v_lshrrev_b32 v{t}, 3, v{V_N}")
    p(f"v_mul_u32_u24 v{t}, 3, v{t}")
    p(f"v_xor_b32 v{t}, v{t}, v{V_G}")
    p(f"v_lshlrev_b32 v{t}, 4, v{t}")
    p(f"v_lshl_add_u32 v{t}, v{V_N}, 6, v{t}")
    p(f"s_lshl_b32 s{S_TMP}, s{S_TG}, 12")
    p(f"v_add_u32 v{VX0}, s{S_TMP}, v{t}")
    p(f"v_lshrrev_b32 v{t}, 1, v{V_G}")
    p(f"v_lshlrev_b32 v{t}, 4, v{t}")
    p(f"v_and_b32 v{t+1}, 1, v{V_G}")
    p(f"v_lshl_add_u32 v{t}, v{t+1}, 2, v{t}")
    p(f"v_lshrrev_b32 v{t+1}, 2, v{V_N}")
    p(f"v_add_u32 v{t}, v{t}, v{t+1}")
    p(f"v_mul_u32_u24 v{t}, 416, v{t}")
    p(f"v_and_b32 v{t+1}, 3, v{V_N}")
    p(f"v_lshl_add_u32 v{VW0}, v{t+1}, 3, v{t}")
    p(f"v_mov_b32 v{VX}, v{VX0}")
    p(f"v_mov_b32 v{VW}, v{VW0}")
    for i in range(NU*8): p(f"v_mov_b32 v{ACC+i}, 0")
    for i in range(NU): p(f"v_mov_b32 v{CS+i}, 0")
    for i in range(4): p(f"v_mov_b32 v{ST+i}, 0")
    p(f"s_mov_b32 s{S_ONES}, 0x3f803f80")
    p(f"v_mov_b32 v{t}, 0")
    p(f"v_lshlrev_b32 v{t+1}, 4, v{V_L}")
    p(f"v_mov_b32 v{t+2}, 0")
    p(f"v_mov_b32 v{t+3}, 0")
    p(f"v_mov_b32 v{t+4}, 0")
    p(f"v_add_u32 v{t+1}, {CS_TAB}, v{t+1}")
    p(f"v_mov_b32 v{t+5}, 0")
    p(f"ds_write_b128 v{t+1}, v[{t+2}:{t+5}]")
    p(f"s_mov_b32 s{S_C}, 0")
    stamp(p, 2)
    p(f"s_waitcnt vmcnt({NU + 2*nper}) lgkmcnt(0)")
    stamp(p, 3)
    p("s_barrier")
    stamp(p, 4)
    lg = Fifo(p, "lgkmcnt", 15)
    rd_x(p, lg, 0, 0)
    for u in range(NU): rd_w(p, lg, u, u0, 0)
    entry = list(lg.q)
    if NO_LDSRD: entry = []
    p.inloop = True
    L = f"{name}_loop"
    p.label(L)
    if STAMP and CHUNK_STAMPS:
        p(f"s_memtime s[{S_TS}:{S_TS+1}]")
        p("s_waitcnt lgkmcnt(0)")
        for cc in range(8):
            p(f"s_cmp_eq_u32 s{S_C}, {cc}")
            p(f"s_cselect_b32 s{61+cc}, s{S_TS}, s{61+cc}")
    A_cs, A_dn, B_cs, B_dn = (f"{name}_{x}" for x in ("Acs", "Adn", "Bcs", "Bdn"))
    p(f"s_and_b32 s{S_TMP}, s{S_C}, 1")
    p(f"s_lshl_b32 s48, s{S_TMP}, 1")
    p(f"s_cmp_eq_u32 s48, s{S_TG}")
    p(f"s_cbranch_scc1 {A_cs}")
    lg.q = list(entry); step(p, lg, role, 0, False, "A"); mid = list(lg.q)
    p(f"s_branch {A_dn}")
    p.label(A_cs)
    lg.q = list(entry); step(p, lg, role, 0, True, "Ac"); assert lg.q == mid
    p.label(A_dn)
    p(f"s_or_b32 s48, s48, 1")
    p(f"s_cmp_eq_u32 s48, s{S_TG}")
    p(f"s_cbranch_scc1 {B_cs}")
    lg.q = list(mid); step(p, lg, role, 1, False, "B"); end = list(lg.q)
    p(f"s_branch {B_dn}")
    p.label(B_cs)
    lg.q = list(mid); step(p, lg, role, 1, True, "Bc"); assert lg.q == end
    p.label(B_dn)
    assert end == entry, (end, entry)
    p(f"s_add_u32 s{S_C}, s{S_C}, 1")
    p(f"s_cmp_lt_u32 s{S_C}, 8")
    p(f"s_cbranch_scc1 {L}")
    p("s_waitcnt lgkmcnt(0)")
    stamp(p, 5)
    p(f"v_lshlrev_b32 v{t}, 2, v{V_N}")
    p(f"v_add_u32 v{t}, {CS_TAB}, v{t}")
    for u in range(NU):
        if not NO_ADD: p(f"ds_add_f32 v{t}, v{CS+u} offset:{(u0+u)*64}")
    if role == 1:
        for i in range(4):
            p(f"v_mov_b32 v{t+1+i}, v{ST+i}")
        p.nop(1)
        for i in range(4):
            p(f"v_permlane16_swap_b32 v{ST+i}, v{t+1+i}")
        for i in range(4):
            p(f"v_add_f32 v{ST+i}, v{ST+i}, v{t+1+i}")
        for i in range(4):
            p(f"v_mov_b32 v{t+1+i}, v{ST+i}")
        p.nop(1)
        for i in range(4):
            p(f"v_permlane32_swap_b32 v{ST+i}, v{t+1+i}")
        for i in range(4):
            p(f"v_add_f32 v{ST+i}, v{ST+i}, v{t+1+i}")
        for tt in range(2):
            p(f"v_mul_f32 v{ST+tt}, {f32(1/512)}, v{ST+tt}")
            p(f"v_mul_f32 v{ST+2+tt}, {f32(1/512)}, v{ST+2+tt}")
        for tt in range(2):
            p(f"v_fma_f32 v{ST+2+tt}, -v{ST+tt}, v{ST+tt}, v{ST+2+tt}")
        for tt in range(2):
            p(f"v_max_f32 v{ST+2+tt}, 0, v{ST+2+tt}")
            p(f"v_add_f32 v{ST+2+tt}, {f32(1e-5)}, v{ST+2+tt}")
        for tt in range(2):
            p(f"v_rsq_f32 v{E_ST+2*tt}, v{ST+2+tt}")
        p.nop(1)
        for tt in range(2):
            p(f"v_mul_f32 v{E_ST+1+2*tt}, v{ST+tt}, v{E_ST+2*tt}")
        p(f"s_lshl_b32 s{S_TMP}, s{S_TG}, 8")
        p(f"s_add_u32 s{S_TMP}, s{S_TMP}, {ST_TAB}")
        p(f"v_lshl_add_u32 v{t+1}, v{V_N}, 3, s{S_TMP}")
        for tt in range(2):
            p(f"ds_write_b64 v{t+1}, v[{E_ST+2*tt}:{E_ST+1+2*tt}] offset:{tt*128}")
    p("s_waitcnt lgkmcnt(0)")
    p("s_barrier")
    if role == 0:
        p(f"s_lshl_b32 s{S_TMP}, s{S_TG}, 8")
        p(f"s_add_u32 s{S_TMP}, s{S_TMP}, {ST_TAB}")
        p(f"v_lshl_add_u32 v{t+1}, v{V_N}, 3, s{S_TMP}")
        for tt in range(2):
            p(f"ds_read_b64 v[{E_ST+2*tt}:{E_ST+1+2*tt}], v{t+1} offset:{tt*128}")
    p(f"v_lshlrev_b32 v{t}, 4, v{V_G}")
    p(f"v_add_u32 v{t}, {CS_TAB}, v{t}")
    for u in range(NU):
        p(f"ds_read_b128 {v(WF+4*u,4)}, v{t} offset:{(u0+u)*64}")
    p(f"v_lshrrev_b32 v{t}, 1, v{V_G}")
    p(f"v_and_b32 v{t+1}, 1, v{V_G}")
    p(f"v_lshl_add_u32 v{t+2}, v{t}, 5, v{V_N}")
    p(f"v_lshlrev_b32 v{t+2}, 4, v{t+2}")
    p(f"v_lshl_add_u32 v{E_QS}, v{t+1}, 3, v{t+2}")
    p(f"v_mul_u32_u24 v{t+2}, 272, v{t+1}")
    p(f"v_lshl_add_u32 v{t+2}, v{t}, 3, v{t+2}")
    p(f"v_add_u32 v{E_OS}, 256, v{t+2}")
    p(f"v_and_b32 v{t+3}, 3, v{V_N}")
    p(f"v_and_b32 v{t+4}, 4, v{V_N}")
    p(f"v_lshl_or_b32 v{t+3}, v{t+4}, 1, v{t+3}")
    p(f"v_and_b32 v{t+4}, 8, v{V_N}")
    p(f"v_lshrrev_b32 v{t+4}, 1, v{t+4}")
    p(f"v_or_b32 v{t+3}, v{t+3}, v{t+4}")
    p(f"v_lshl_add_u32 v{E_VS}, v{t+3}, 4, v{t+2}")
    p(f"s_lshl_b32 s{S_TMP}, s{S_W}, 10")
    p(f"v_lshlrev_b32 v{t}, 3, v{V_G}")
    p(f"v_lshl_add_u32 v{t}, v{V_N}, 5, v{t}")
    p(f"v_add_u32 v{E_TW}, s{S_TMP}, v{t}")
    p(f"v_lshlrev_b32 v{t}, 3, v{V_L}")
    p(f"v_add_u32 v{E_TR}, s{S_TMP}, v{t}")
    p(f"v_mov_b32 v{E_ONE}, 0x3f803f80")
    p(f"v_mov_b32 v{E_ONE+1}, 0x3f803f80")
    p("s_waitcnt vmcnt(0) lgkmcnt(0)")
    stamp(p, 6)
    for u in range(NU): epilogue_unit(p, role, u)
    stamp(p, 7)
    if STAMP:
        p("s_waitcnt vmcnt(0)")
        stamp(p, 8)
        stamps_out(p, 17)
    p("s_endpgm")

def srd_setup(p):
    p(f"s_mov_b32 s{S_X}, s4");  p(f"s_mov_b32 s{S_X+1}, s5")
    p(f"s_mov_b32 s{S_X+2}, 0x200000"); p(f"s_mov_b32 s{S_X+3}, 0x20000")
    p(f"s_mov_b32 s{S_B}, s14"); p(f"s_mov_b32 s{S_B+1}, s15")
    p(f"s_mov_b32 s{S_B+2}, 3584"); p(f"s_mov_b32 s{S_B+3}, 0x20000")
    p(f"s_mov_b32 s{S_WS+2}, {WS_USED}"); p(f"s_mov_b32 s{S_WS+3}, 0x20000")
    p("s_sub_u32 s12, s12, 3072")
    p("s_subb_u32 s13, s13, 0")
    p(f"v_mov_b32 v{T0+5}, 3072")
    p(f"v_mov_b32 v{T0+6}, 3584")
    p(f"v_mov_b32 v{T0+7}, s6")
    p(f"v_mov_b32 v{T0+8}, s7")
    p(f"v_mov_b32 v{T0+9}, s12")
    p(f"v_mov_b32 v{T0+10}, s13")

def gen_k1(p, name="k1_kernel"):
    p.raw(f".globl {name}\n.p2align 8\n.type {name},@function\n{name}:")
    p("s_cmp_ge_u32 s2, 256")
    p(f"s_cbranch_scc1 {name}_exit")
    stamp(p, 0)
    p("s_load_dwordx4 s[4:7], s[0:1], 0")
    p("s_load_dwordx4 s[12:15], s[0:1], 32")
    p(f"s_load_dwordx2 s[{S_WS}:{S_WS+1}], s[0:1], 80")
    p(f"v_lshrrev_b32 v4, 6, v0")
    p(f"v_and_b32 v{V_L}, 63, v0")
    p(f"v_readfirstlane_b32 s{S_W}, v4")
    p(f"v_and_b32 v{V_N}, 15, v{V_L}")
    p(f"v_lshrrev_b32 v{V_G}, 4, v{V_L}")
    p("s_and_b32 s44, s2, 1")
    p("s_lshl_b32 s44, s44, 3")
    p("s_lshr_b32 s45, s2, 3")
    p("s_and_b32 s46, s45, 7")
    p(f"s_add_u32 s{S_RB}, s44, s46")
    p("s_lshr_b32 s44, s2, 1")
    p("s_and_b32 s44, s44, 3")
    p("s_lshl_b32 s44, s44, 2")
    p("s_lshr_b32 s45, s45, 3")
    p(f"s_add_u32 s{S_CB}, s44, s45")
    p(f"s_mul_i32 s{S_CB416}, s{S_CB}, 416")
    p(f"s_and_b32 s{S_TG}, s{S_W}, 3")
    p(f"s_lshl_b32 s{S_T}, s{S_RB}, 2")
    p(f"s_add_u32 s{S_T}, s{S_T}, s{S_TG}")
    p(f"s_cmp_ge_u32 s{S_W}, 4")
    p(f"s_cbranch_scc1 {name}_role1")
    role_code(p, 0, name + "_r0")
    p.label(f"{name}_role1")
    role_code(p, 1, name + "_r1")
    p.label(f"{name}_exit")
    p("s_endpgm")

def kd(name, vgprs, sgprs=96):
    return f""".section .rodata,"a"
.p2align 6
.amdhsa_kernel {name}
  .amdhsa_next_free_vgpr {vgprs}
  .amdhsa_next_free_sgpr {sgprs}
  .amdhsa_accum_offset {(vgprs+3)//4*4}
  .amdhsa_group_segment_fixed_size 0
  .amdhsa_kernarg_size 88
  .amdhsa_user_sgpr_count 2
  .amdhsa_user_sgpr_kernarg_segment_ptr 1
  .amdhsa_system_sgpr_workgroup_id_x 1
.end_amdhsa_kernel
.text
"""
```

```python
from asmlib import *
from k1 import WS_Q, WS_K, WS_V, VH, WS_H, WS_G, WS_O, WS_USED, WS_STAMP, f32, kd
PRIO_A = [0]*8
PRIO_B = [0]*8
STAMP = False
K2_LDS = 163840
LK = 0
LV = 65536
K2_VGPRS = 128

V_L = 1
QF = 4
KF = 8
VF0, VF1 = 12, 16
PP = 20
SA, SB = 32, 48
OO = 64
VKA, VVA = 80, 81
T0 = 84
S_WS = 8
S_H, S_QB, S_W, S_T = 12, 13, 14, 15
S_IT = 16

SCHED = 1
VF0B = 24 + 4
def attn_tile(p, lg, j, cur, nxt, first, last_s, last_k, koff, voff, vnext):
    vf0_cur, vf0_nxt = (VF0, VF0B) if j % 2 == 0 else (VF0B, VF0)
    E = lambda i: p(f"v_exp_f32 v{cur+i}, v{cur+i}")
    C = lambda k: p(f"v_cvt_pk_bf16_f32 v{PP+k}, v{cur+2*k}, v{cur+2*k+1}")
    Cp = lambda k: (None if first else p(f"v_cvt_pk_bf16_f32 v{PP+k}, v{nxt+2*k}, v{nxt+2*k+1}"))
    def MS():
        p("s_waitcnt lgkmcnt(0)"); lg.q = []
        if not last_s:
            p(f"v_mfma_f32_32x32x16_bf16 {v(nxt,16)}, {v(KF,4)}, {v(QF,4)}, 0")
            if not last_k:
                p(f"ds_read_b128 {v(KF,4)}, v{VKA} offset:{koff}"); lg.issue('K')
        if vnext is not None:
            p(f"ds_read_b128 {v(vf0_nxt,4)}, v{VVA} offset:{vnext}"); lg.issue('V0')
    def MPV1():
        if not first:
            p(f"v_mfma_f32_32x32x16_bf16 {v(OO,16)}, {v(VF1,4)}, {v(PP+4,4)}, {v(OO,16)}")
        p(f"ds_read_b128 {v(VF1,4)}, v{VVA} offset:{voff}"); lg.issue('V1')
    def MPV0():
        p(f"v_mfma_f32_32x32x16_bf16 {v(OO,16)}, {v(vf0_cur,4)}, {v(PP,4)}, {v(OO,16)}")
    for op in SCHEDS[SCHED].split():
        if op == "MS": MS()
        elif op == "P1": MPV1()
        elif op == "P0": MPV0()
        elif op[0] == "E": E(int(op[1:]))
        elif op[0] == "C": C(int(op[1:]))
        elif op[0] == "c": Cp(int(op[1:]))
SCHEDS = {
 1: "MS E0 E1 E2 C0 E3 E4 C1 E5 P1 E6 E7 C2 E8 C3 E9 E10 P0 C4 E11 E12 C5 E13 E14 E15 C6 C7",
 2: "E0 E1 c6 c7 MS E2 E3 E4 E5 P1 E6 E7 C0 C1 E8 E9 C2 C3 E10 E11 P0 E12 E13 C4 C5 E14 E15",
 3: "E0 E1 E2 c6 c7 MS E3 E4 E5 E6 E7 P1 C0 E8 C1 E9 C2 E10 C3 E11 E12 P0 E13 C4 E14 C5 E15",
 4: "E0 c6 E1 c7 MS E2 E3 E4 E5 E6 P1 C0 E7 C1 E8 C2 E9 E10 C3 E11 E12 P0 E13 C4 E14 C5 E15",
 5: "MS E0 E1 E2 E3 E4 E5 E6 E7 P1 C0 C1 C2 C3 E8 E9 E10 E11 P0 E12 E13 E14 E15 C4 C5 C6 C7",
}
TAIL = {1: [], 2: [6, 7], 3: [6, 7], 4: [6, 7], 5: []}

def slow_path(p, name):
    M, Lr = T0 + 0, T0 + 1
    t = T0 + 2
    p(f"v_mov_b32 v{M}, 0xff800000")
    for i in range(16): p(f"v_mov_b32 v{OO+i}, 0")
    p(f"v_mov_b32 v{T0+20}, v{T0+22}")
    p(f"v_mov_b32 v{T0+21}, v{T0+23}")
    p(f"s_mov_b32 s{S_IT}, 0")
    L = f"{name}_slow"
    p.label(L)
    p(f"ds_read_b128 {v(KF,4)}, v{T0+20}")
    p(f"ds_read_b128 {v(VF0,4)}, v{T0+21}")
    p(f"ds_read_b128 {v(VF1,4)}, v{T0+21} offset:544")
    p("s_waitcnt lgkmcnt(0)")
    p(f"v_mfma_f32_32x32x16_bf16 {v(SA,16)}, {v(KF,4)}, {v(QF,4)}, 0")
    p.nop(14)
    p(f"v_max3_f32 v{t}, v{SA}, v{SA+1}, v{SA+2}")
    for i in range(3, 15, 2):
        p(f"v_max3_f32 v{t}, v{t}, v{SA+i}, v{SA+i+1}")
    p(f"v_max_f32 v{t}, v{t}, v{SA+15}")
    p(f"v_mov_b32 v{t+1}, v{t}")
    p.nop(2)
    p(f"v_permlane32_swap_b32 v{t}, v{t+1}")
    p(f"v_max3_f32 v{t}, v{t}, v{t+1}, v{M}")
    p(f"v_sub_f32 v{t+1}, v{M}, v{t}")
    p(f"v_cmp_eq_f32 vcc, v{M}, v{t}")
    p(f"v_exp_f32 v{t+1}, v{t+1}")
    p(f"v_mov_b32 v{t+2}, 1.0")
    p(f"v_cndmask_b32 v{t+1}, v{t+1}, v{t+2}, vcc")
    p(f"v_mov_b32 v{M}, v{t}")
    for i in range(16): p(f"v_mul_f32 v{OO+i}, v{OO+i}, v{t+1}")
    for i in range(16): p(f"v_sub_f32 v{SA+i}, v{SA+i}, v{M}")
    for i in range(16): p(f"v_exp_f32 v{SA+i}, v{SA+i}")
    p.nop(1)
    for k in range(8): p(f"v_cvt_pk_bf16_f32 v{PP+k}, v{SA+2*k}, v{SA+2*k+1}")
    p.nop(2)
    p(f"v_mfma_f32_32x32x16_bf16 {v(OO,16)}, {v(VF0,4)}, {v(PP,4)}, {v(OO,16)}")
    p(f"v_mfma_f32_32x32x16_bf16 {v(OO,16)}, {v(VF1,4)}, {v(PP+4,4)}, {v(OO,16)}")
    p(f"v_add_u32 v{T0+20}, 1024, v{T0+20}")
    p(f"v_add_u32 v{T0+21}, 1088, v{T0+21}")
    p.nop(14)
    p(f"s_add_u32 s{S_IT}, s{S_IT}, 1")
    p(f"s_cmp_lt_u32 s{S_IT}, 64")
    p(f"s_cbranch_scc1 {L}")

def loader(p, name):
    w = S_W
    p(f"s_sub_u32 s20, s{S_W}, 8")
    p(f"v_lshlrev_b32 v4, 4, v{V_L}")
    p(f"s_lshl_b32 s21, s{S_H}, 16")
    p(f"s_add_u32 s21, s21, {WS_K}")
    p(f"s_mul_i32 s22, s{S_H}, {VH}")
    p(f"s_add_u32 s22, s22, {WS_V}")
    p(f"s_lshl_b32 s23, s20, 11")
    p(f"s_mul_i32 s24, s20, 3072")
    for i in range(2):
        p(f"s_add_u32 m0, s23, {LK + i*1024}")
        p(f"s_add_u32 s25, s21, s23")
        if i: p(f"s_add_u32 s25, s25, {i*1024}")
        p(f"buffer_load_dwordx4 v4, s[{S_WS}:{S_WS+3}], s25 offen lds")
    for i in range(3):
        p(f"s_add_u32 m0, s24, {LV + i*1024}")
        p(f"s_add_u32 s25, s22, s24")
        if i: p(f"s_add_u32 s25, s25, {i*1024}")
        p(f"buffer_load_dwordx4 v4, s[{S_WS}:{S_WS+3}], s25 offen lds")
    p("s_waitcnt vmcnt(0)")
    p("s_barrier")
    p(f"s_mul_i32 s23, s20, {14*1024}")
    p(f"s_add_u32 s26, s23, {8*1024}")
    p(f"s_add_u32 s27, s23, {12*1024}")
    p(f"s_mov_b32 s28, 0")
    L = f"{name}_ld"
    p.label(L)
    p(f"s_add_u32 s29, s26, s28")
    p(f"s_add_u32 m0, s29, {LK}")
    p(f"s_add_u32 s25, s21, s29")
    p(f"buffer_load_dwordx4 v4, s[{S_WS}:{S_WS+3}], s25 offen lds")
    p(f"s_add_u32 s29, s27, s28")
    p(f"s_add_u32 m0, s29, {LV}")
    p(f"s_add_u32 s25, s22, s29")
    p(f"buffer_load_dwordx4 v4, s[{S_WS}:{S_WS+3}], s25 offen lds")
    p(f"s_add_u32 s28, s28, 1024")
    p(f"s_cmp_lt_u32 s28, {14*1024}")
    p(f"s_cbranch_scc1 {L}")
    p("s_waitcnt vmcnt(0)")
    p("s_barrier")

def stamp(p, idx):
    if not STAMP: return
    p("s_memtime s[40:41]")
    p("s_waitcnt lgkmcnt(0)")
    p(f"s_mov_b32 s{44+idx}, s40")

def gen_k2(p, name="k2_kernel"):
    p.raw(f".globl {name}\n.p2align 8\n.type {name},@function\n{name}:")
    p("s_cmp_ge_u32 s2, 256")
    p(f"s_cbranch_scc1 {name}_exit")
    stamp(p, 0)
    p(f"s_load_dwordx2 s[{S_WS}:{S_WS+1}], s[0:1], 80")
    p(f"v_lshrrev_b32 v4, 6, v0")
    p(f"v_and_b32 v{V_L}, 63, v0")
    p(f"v_readfirstlane_b32 s{S_W}, v4")
    p("s_and_b32 s20, s2, 7")
    p("s_lshl_b32 s20, s20, 2")
    p("s_lshr_b32 s21, s2, 3")
    p("s_and_b32 s21, s21, 3")
    p(f"s_add_u32 s{S_H}, s20, s21")
    p(f"s_lshr_b32 s{S_QB}, s2, 5")
    p(f"s_mov_b32 s{S_WS+2}, {WS_USED}")
    p(f"s_mov_b32 s{S_WS+3}, 0x20000")
    p("s_waitcnt lgkmcnt(0)")
    p(f"s_cmp_ge_u32 s{S_W}, 8")
    p(f"s_cbranch_scc0 {name}_attn")
    loader(p, name)
    p("s_endpgm")
    p.label(f"{name}_attn")
    p(f"s_lshl_b32 s{S_T}, s{S_QB}, 3")
    p(f"s_add_u32 s{S_T}, s{S_T}, s{S_W}")
    p(f"v_lshlrev_b32 v{T0}, 4, v{V_L}")
    p(f"s_lshl_b32 s20, s{S_H}, 16")
    p(f"s_lshl_b32 s21, s{S_T}, 10")
    p(f"s_add_u32 s20, s20, s21")
    if WS_Q: p(f"s_add_u32 s20, s20, {WS_Q}")
    p(f"buffer_load_dwordx4 {v(QF,4)}, v{T0}, s[{S_WS}:{S_WS+3}], s20 offen")
    p(f"v_add_u32 v{VKA}, {LK}, v{T0}")
    p(f"v_and_b32 v{T0+1}, 31, v{V_L}")
    p(f"v_lshrrev_b32 v{T0+2}, 5, v{V_L}")
    p(f"v_mul_u32_u24 v{T0+2}, 272, v{T0+2}")
    p(f"v_lshl_add_u32 v{T0+1}, v{T0+1}, 4, v{T0+2}")
    p(f"v_add_u32 v{VVA}, {LV}, v{T0+1}")
    p(f"v_mov_b32 v{T0+22}, v{VKA}")
    p(f"v_mov_b32 v{T0+23}, v{VVA}")
    for i in range(16): p(f"v_mov_b32 v{OO+i}, 0")
    stamp(p, 1)
    p("s_waitcnt vmcnt(0)")
    p("s_barrier")
    stamp(p, 2)
    lg = Fifo(p, "lgkmcnt", 15)
    p(f"ds_read_b128 {v(KF,4)}, v{VKA}")
    p(f"ds_read_b128 {v(VF0,4)}, v{VVA}")
    p("s_waitcnt lgkmcnt(1)")
    p(f"v_mfma_f32_32x32x16_bf16 {v(SA,16)}, {v(KF,4)}, {v(QF,4)}, 0")
    p(f"ds_read_b128 {v(KF,4)}, v{VKA} offset:1024")
    lg.q = ['V0', 'K']
    p.nop(12)
    def setprio_static(g):
        a, b = PRIO_A[g], PRIO_B[g]
        pa = PRIO_A[g-1] if g else 0; pb = PRIO_B[g-1] if g else 0
        if a == pa and b == pb: return
        l1 = p.newlabel("pr"); l2 = p.newlabel("pr")
        p(f"s_cmp_ge_u32 s{S_W}, 4")
        p(f"s_cbranch_scc1 {l1}")
        p(f"s_setprio {a}")
        p(f"s_branch {l2}")
        p.label(l1)
        p(f"s_setprio {b}")
        p.label(l2)
    def setprio_dyn():
        chg = [g for g in range(1, 7) if PRIO_A[g] != PRIO_A[g-1] or PRIO_B[g] != PRIO_B[g-1]]
        for g in chg:
            l0 = p.newlabel("pd")
            p(f"s_cmp_lg_u32 s{S_IT}, {g}")
            p(f"s_cbranch_scc1 {l0}")
            l1 = p.newlabel("pr"); l2 = p.newlabel("pr")
            p(f"s_cmp_ge_u32 s{S_W}, 4")
            p(f"s_cbranch_scc1 {l1}")
            p(f"s_setprio {PRIO_A[g]}")
            p(f"s_branch {l2}")
            p.label(l1)
            p(f"s_setprio {PRIO_B[g]}")
            p.label(l2)
            p.label(l0)
    def group(first_group, last_group):
        for jj in range(8):
            cur, nxt = (SA, SB) if jj % 2 == 0 else (SB, SA)
            first = first_group and jj == 0
            last_s = last_group and jj == 7
            last_k = last_group and jj >= 6
            koff = (jj + 2) * 1024
            voff = jj * 1088 + 544
            vnext = None if (last_group and jj == 7) else (jj + 1) * 1088
            if first_group and jj == 6:
                p("s_barrier")
            attn_tile(p, lg, jj, cur, nxt, first, last_s, last_k, koff, voff, vnext)
    setprio_static(0)
    group(True, False)
    st0 = list(lg.q)
    p(f"v_add_u32 v{VKA}, 8192, v{VKA}")
    p(f"v_add_u32 v{VVA}, {8*1088}, v{VVA}")
    stamp(p, 3)
    p(f"s_mov_b32 s{S_IT}, 1")
    L = f"{name}_loop"
    p.label(L)
    setprio_dyn()
    lg.q = list(st0)
    group(False, False)
    assert lg.q == st0, (lg.q, st0)
    p(f"v_add_u32 v{VKA}, 8192, v{VKA}")
    p(f"v_add_u32 v{VVA}, {8*1088}, v{VVA}")
    p(f"s_add_u32 s{S_IT}, s{S_IT}, 1")
    p(f"s_cmp_lt_u32 s{S_IT}, 7")
    p(f"s_cbranch_scc1 {L}")
    setprio_static(7)
    group(False, True)
    p.nop(1)
    for k in TAIL[SCHED]:
        p(f"v_cvt_pk_bf16_f32 v{PP+k}, v{SB+2*k}, v{SB+2*k+1}")
    lg.wait('V1')
    p.nop(1)
    p(f"v_mfma_f32_32x32x16_bf16 {v(OO,16)}, {v(VF1,4)}, {v(PP+4,4)}, {v(OO,16)}")
    stamp(p, 4)
    p.nop(12)
    fin = f"{name}_fin"
    t = T0
    def get_l():
        p(f"v_mov_b32 v{t}, v{OO+8}")
        p(f"v_mov_b32 v{t+1}, v{OO+8}")
        p.nop(2)
        p(f"v_permlane32_swap_b32 v{t}, v{t+1}")
    get_l()
    p(f"v_max3_f32 v{t+2}, |v{OO}|, |v{OO+1}|, |v{OO+2}|")
    p(f"v_max3_f32 v{t+2}, v{t+2}, |v{OO+3}|, |v{OO+4}|")
    p(f"v_max3_f32 v{t+2}, v{t+2}, |v{OO+5}|, |v{OO+6}|")
    p(f"v_max_f32 v{t+2}, v{t+2}, |v{OO+7}|")
    p(f"v_add_f32 v{t+3}, v{OO}, v{OO+1}")
    for i in range(2, 8): p(f"v_add_f32 v{t+3}, v{t+3}, v{OO+i}")
    p(f"v_mov_b32 v{t+4}, {f32(2.0**-60)}")
    p(f"v_mov_b32 v{t+5}, {f32(2.0**60)}")
    p(f"v_cmp_ge_f32 s[20:21], v{t}, v{t+4}")
    p(f"v_cmp_le_f32 s[22:23], v{t}, v{t+5}")
    p(f"v_mov_b32 v{t+5}, {f32(2.0**120)}")
    p(f"v_cmp_le_f32 s[24:25], v{t+2}, v{t+5}")
    p(f"v_cmp_o_f32 s[26:27], v{t+3}, v{t+3}")
    p.nop(1)
    p("s_and_b64 s[20:21], s[20:21], s[22:23]")
    p("s_and_b64 s[24:25], s[24:25], s[26:27]")
    p("s_and_b64 s[20:21], s[20:21], s[24:25]")
    p("s_cmp_eq_u64 s[20:21], -1")
    p(f"s_cbranch_scc1 {fin}")
    slow_path(p, name)
    get_l()
    p.label(fin)
    p(f"v_rcp_f32 v{t}, v{t}")
    p.nop(1)
    for i in range(8): p(f"v_mul_f32 v{OO+i}, v{OO+i}, v{t}")
    for k in range(4): p(f"v_cvt_pk_bf16_f32 v{PP+k}, v{OO+2*k}, v{OO+2*k+1}")
    p(f"s_lshl_b32 s20, s{S_T}, 5")
    p(f"s_add_u32 s20, s20, s{S_H}")
    p(f"s_lshl_b32 s20, s20, 10")
    p(f"s_add_u32 s20, s20, {WS_O}")
    p(f"v_lshlrev_b32 v{t+1}, 4, v{V_L}")
    p(f"buffer_store_dwordx4 {v(PP,4)}, v{t+1}, s[{S_WS}:{S_WS+3}], s20 offen")
    if STAMP:
        p("s_waitcnt vmcnt(0)")
        stamp(p, 5)
        p(f"s_lshl_b32 s20, s2, 10")
        p(f"s_lshl_b32 s21, s{S_W}, 6")
        p("s_add_u32 s20, s20, s21")
        p(f"s_add_u32 s20, s20, {WS_STAMP}")
        for i in range(6):
            p(f"v_mov_b32 v4, s{44+i}")
            p(f"v_mov_b32 v5, {4*i}")
            p(f"buffer_store_dword v4, v5, s[{S_WS}:{S_WS+3}], s20 offen")
    p.label(f"{name}_exit")
    p("s_endpgm")
```

```python
from asmlib import *
from k1 import WS_Q, WS_K, WS_V, VH, WS_H, WS_G, WS_O, WS_USED, WS_STAMP, f32, kd
K3_VGPRS = 256
K3_LDS = 65536
V_L = 1
VA, VB, VTR = 2, 3, 4
ACS, ACG = 16, 80
WFR = 144
BFR = 160
T0 = 6
S_WS, S_W2, S_WO, S_X, S_OUT, S_B2 = 8, 12, 16, 20, 24, 28
S_W, S_TB, S_FB = 32, 33, 34
S_RING, S_KA, S_KB0, S_KB1, S_I, S_T = 35, 36, 37, 38, 39, 40

def tgemm(p, name, acc, srdW, RS, nsteps, D):
    assert nsteps % D == 0 and D % 2 == 0 or nsteps == D
    def issue(slot):
        for a in range(2):
            p(f"s_add_u32 m0, s{S_RING}, {(slot*2+a)*1024}")
            p(f"s_add_u32 s{S_T}, s{S_KA}, {a*64}")
            p(f"buffer_load_dwordx4 v{VA}, s[{srdW}:{srdW+3}], s{S_T} offen lds")
        for b in range(2):
            p(f"buffer_load_dwordx4 {v(BFR+(slot*2+b)*4,4)}, v{VB}, s[{S_WS}:{S_WS+3}], s{S_KB0+b} offen")
        p(f"s_add_u32 s{S_KA}, s{S_KA}, {16*RS}")
        p(f"s_add_u32 s{S_KB0}, s{S_KB0}, 1024")
        p(f"s_add_u32 s{S_KB1}, s{S_KB1}, 1024")
    def rdA(slot, buf):
        for a in range(2):
            for e in range(2):
                p(f"ds_read_b64_tr_b16 {v(WFR+(buf*2+a)*4+2*e,2)}, v{VTR} offset:{(slot*2+a)*1024 + e*256}")
    def mf(slot, buf):
        for a in range(2):
            for b in range(2):
                r = acc + (a*2+b)*16
                p(f"v_mfma_f32_32x32x16_bf16 {v(r,16)}, {v(WFR+(buf*2+a)*4,4)}, {v(BFR+(slot*2+b)*4,4)}, {v(r,16)}")
    for d in range(D): issue(d)
    p(f"s_waitcnt vmcnt({4*(D-1)})")
    rdA(0, 0)
    niter = nsteps // D
    if niter > 1:
        p(f"s_mov_b32 s{S_I}, 0")
        L = f"{name}_loop"
        p.label(L)
        for d in range(D):
            nd = (d + 1) % D
            p(f"s_waitcnt vmcnt({4*(D-2)})")
            p("s_waitcnt lgkmcnt(0)")
            rdA(nd, (d+1) % 2)
            mf(d, d % 2)
            issue(d)
        p(f"s_add_u32 s{S_I}, s{S_I}, 1")
        p(f"s_cmp_lt_u32 s{S_I}, {niter-1}")
        p(f"s_cbranch_scc1 {L}")
    for d in range(D):
        if d + 1 < D:
            p(f"s_waitcnt vmcnt({4*(D-2-d)})")
        p("s_waitcnt lgkmcnt(0)")
        if d + 1 < D: rdA(d + 1, (d+1) % 2)
        mf(d, d % 2)

def gen_k3(p, name="k3_kernel"):
    p.raw(f".globl {name}\n.p2align 8\n.type {name},@function\n{name}:")
    p("s_cmp_ge_u32 s2, 256")
    p(f"s_cbranch_scc1 {name}_exit")
    p(f"s_load_dwordx2 s[{S_X}:{S_X+1}], s[0:1], 0")
    p(f"s_load_dwordx2 s[{S_WO}:{S_WO+1}], s[0:1], 16")
    p(f"s_load_dwordx2 s[{S_W2}:{S_W2+1}], s[0:1], 48")
    p(f"s_load_dwordx2 s[{S_B2}:{S_B2+1}], s[0:1], 56")
    p(f"s_load_dwordx2 s[{S_OUT}:{S_OUT+1}], s[0:1], 64")
    p(f"s_load_dwordx2 s[{S_WS}:{S_WS+1}], s[0:1], 80")
    p(f"v_lshrrev_b32 v{T0}, 6, v0")
    p(f"v_and_b32 v{V_L}, 63, v0")
    p(f"v_readfirstlane_b32 s{S_W}, v{T0}")
    p("s_and_b32 s41, s2, 7")
    p("s_lshl_b32 s41, s41, 2")
    p("s_lshr_b32 s42, s2, 3")
    p("s_and_b32 s42, s42, 3")
    p(f"s_add_u32 s{S_TB}, s41, s42")
    p(f"s_lshr_b32 s{S_FB}, s2, 5")
    for srd, n in ((S_X, 0x200000), (S_WO, 0x80000), (S_W2, 1792*1024), (S_B2, 1024), (S_OUT, 0x200000), (S_WS, WS_USED)):
        p(f"s_mov_b32 s{srd+2}, {n}")
        p(f"s_mov_b32 s{srd+3}, 0x20000")
    p(f"v_lshrrev_b32 v{T0}, 2, v{V_L}")
    p(f"v_and_b32 v{T0+1}, 3, v{V_L}")
    p(f"v_lshlrev_b32 v{T0+1}, 4, v{T0+1}")
    p(f"v_lshl_add_u32 v{VA}, v{T0}, 10, v{T0+1}")
    p(f"v_lshlrev_b32 v{VB}, 4, v{V_L}")
    p(f"v_lshrrev_b32 v{T0}, 5, v{V_L}")
    p(f"v_lshlrev_b32 v{T0}, 3, v{T0}")
    p(f"v_bfe_u32 v{T0+1}, v{V_L}, 2, 2")
    p(f"v_add_u32 v{T0}, v{T0}, v{T0+1}")
    p(f"v_lshlrev_b32 v{T0}, 6, v{T0}")
    p(f"v_bfe_u32 v{T0+1}, v{V_L}, 4, 1")
    p(f"v_lshl_add_u32 v{T0}, v{T0+1}, 5, v{T0}")
    p(f"v_and_b32 v{T0+1}, 3, v{V_L}")
    p(f"v_lshl_add_u32 v{T0}, v{T0+1}, 3, v{T0}")
    p(f"s_lshl_b32 s{S_RING}, s{S_W}, 14")
    p(f"v_add_u32 v{VTR}, s{S_RING}, v{T0}")
    for i in range(128): p(f"v_mov_b32 v{ACS+i}, 0")
    p("s_waitcnt lgkmcnt(0)")
    p(f"s_lshl_b32 s{S_KA}, s{S_W}, 17")
    p(f"s_lshl_b32 s41, s{S_FB}, 7")
    p(f"s_add_u32 s{S_KA}, s{S_KA}, s41")
    for b in range(2):
        p(f"s_lshl_b32 s42, s{S_TB}, 1")
        if b: p(f"s_add_u32 s42, s42, 1")
        p(f"s_lshl_b32 s42, s42, 5")
        p(f"s_lshl_b32 s43, s{S_W}, 3")
        p(f"s_add_u32 s42, s42, s43")
        p(f"s_lshl_b32 s42, s42, 10")
        p(f"s_add_u32 s{S_KB0+b}, s42, {WS_O}")
    tgemm(p, name + "_s", ACS, S_WO, 1024, 8, 8)
    p(f"s_mul_i32 s{S_KA}, s{S_W}, {448*1024}")
    p(f"s_add_u32 s{S_KA}, s{S_KA}, s41")
    for b in range(2):
        p(f"s_lshl_b32 s42, s{S_TB}, 1")
        if b: p(f"s_add_u32 s42, s42, 1")
        p(f"s_mul_i32 s42, s42, 112")
        p(f"s_mul_i32 s43, s{S_W}, 28")
        p(f"s_add_u32 s42, s42, s43")
        p(f"s_lshl_b32 s42, s42, 10")
        p(f"s_add_u32 s{S_KB0+b}, s42, {WS_H}")
    tgemm(p, name + "_g", ACG, S_W2, 1024, 28, 4)
    p.nop(12)
    p("s_barrier")
    for which, acc in enumerate((ACS, ACG)):
        p(f"s_lshl_b32 s41, s{S_W}, 14")
        p(f"v_add_u32 v{T0}, s41, v{VB}")
        for q in range(4):
            for j in range(4):
                p(f"ds_write_b128 v{T0}, {v(acc+q*16+j*4,4)} offset:{q*4096 + j*1024}")
        p("s_waitcnt lgkmcnt(0)")
        p("s_barrier")
        p(f"s_lshl_b32 s41, s{S_W}, 12")
        p(f"v_add_u32 v{T0}, s41, v{VB}")
        dst = 160 if which == 0 else 176
        for src in range(4):
            for j in range(4):
                r = dst if src == 0 else 192
                p(f"ds_read_b128 {v(r+j*4,4)}, v{T0} offset:{src*16384 + j*1024}")
            p("s_waitcnt lgkmcnt(0)")
            if src:
                for i in range(16): p(f"v_add_f32 v{dst+i}, v{dst+i}, v{192+i}")
        p("s_barrier")
    S, G = 160, 176
    p(f"s_lshr_b32 s41, s{S_W}, 1")
    p(f"s_lshl_b32 s41, s41, 5")
    p(f"s_lshl_b32 s42, s{S_FB}, 6")
    p(f"s_add_u32 s41, s41, s42")
    p(f"s_lshl_b32 s41, s41, 1")
    p(f"s_and_b32 s42, s{S_W}, 1")
    p(f"s_lshl_b32 s42, s42, 5")
    p(f"s_lshl_b32 s43, s{S_TB}, 6")
    p(f"s_add_u32 s42, s42, s43")
    p(f"s_lshl_b32 s42, s42, 10")
    p(f"s_add_u32 s42, s42, s41")
    p(f"v_lshrrev_b32 v{T0}, 5, v{V_L}")
    p(f"v_lshlrev_b32 v{T0}, 3, v{T0}")
    p(f"v_and_b32 v{T0+1}, 31, v{V_L}")
    p(f"v_lshl_add_u32 v{T0+1}, v{T0+1}, 10, v{T0}")
    for j in range(4):
        p(f"buffer_load_dwordx2 v[{200+2*j}:{201+2*j}], v{T0+1}, s[{S_X}:{S_X+3}], s42 offen offset:{16*j}")
        p(f"buffer_load_dwordx2 v[{208+2*j}:{209+2*j}], v{T0}, s[{S_B2}:{S_B2+3}], s41 offen offset:{16*j}")
    p("s_waitcnt vmcnt(0)")
    for j in range(4):
        for i in range(4):
            r = 4*j + i
            src = 208 + 2*j + (i >> 1)
            if i & 1: p(f"v_and_b32 v{216}, 0xffff0000, v{src}")
            else:     p(f"v_lshlrev_b32 v{216}, 16, v{src}")
            p(f"v_add_f32 v{G+r}, v{G+r}, v216")
            p(f"v_mul_f32 v217, {f32(-1.4426950408889634)}, v{G+r}")
            p(f"v_exp_f32 v217, v217")
            p.nop(1)
            p(f"v_add_f32 v217, 1.0, v217")
            p(f"v_rcp_f32 v217, v217")
            p.nop(1)
            p(f"v_mul_f32 v{G+r}, v{G+r}, v217")
            src = 200 + 2*j + (i >> 1)
            if i & 1: p(f"v_and_b32 v{216}, 0xffff0000, v{src}")
            else:     p(f"v_lshlrev_b32 v{216}, 16, v{src}")
            p(f"v_fma_f32 v{S+r}, v{S+r}, v{G+r}, v216")
    for j in range(4):
        p(f"v_cvt_pk_bf16_f32 v{220+2*j}, v{S+4*j}, v{S+4*j+1}")
        p(f"v_cvt_pk_bf16_f32 v{221+2*j}, v{S+4*j+2}, v{S+4*j+3}")
    for j in range(4):
        p(f"buffer_store_dwordx2 v[{220+2*j}:{221+2*j}], v{T0+1}, s[{S_OUT}:{S_OUT+3}], s42 offen offset:{16*j}")
    p.label(f"{name}_exit")
    p("s_endpgm")
```

```python
import sys
sys.path.insert(0, 'gen')
from asmlib import *
import k1, k2, k3
NAME = "recurrent_scan__mha_block__dense_activation_squared_relu__prompt"
HEADER = open(f"cdna_kernels/{NAME}.s.ref").read().split("; Override launch geometry")[0]
def build(launches, gens, out):
    txt = HEADER
    for k, g, b, l in launches:
        txt += f"; @launch kernel={k} grid=({g},1,1) block=({b},1,1) lds={l}\n"
    txt += '.amdgcn_target "amdgcn-amd-amdhsa--gfx950"\n.text\n'
    kds = ""
    for name, gen, vg in gens:
        p = Prog(); gen(p, name); body = p.text()
        probs = check_hazards(body)
        for x in probs: print(name, x)
        assert not probs
        txt += body
        kds += k1.kd(name, vg)
    txt += kds
    open(out, "w").write(txt)
    return txt
if __name__ == "__main__":
    k2.PRIO_A = [2,2,2,2,2,2,2,0]; k2.PRIO_B = [1]*8
    out = sys.argv[1] if len(sys.argv) > 1 else f"cdna_kernels/{NAME}.s"
    build([("k1_kernel", 256, 512, k1.K1_LDS), ("k2_kernel", 256, 768, k2.K2_LDS), ("k3_kernel", 256, 256, k3.K3_LDS)],
          [("k1_kernel", k1.gen_k1, k1.K1_VGPRS), ("k2_kernel", k2.gen_k2, k2.K2_VGPRS), ("k3_kernel", k3.gen_k3, k3.K3_VGPRS)], out)
    print("written", out)
```
